```python
import torch

def _softmax(x, axis=-1):
    return torch.softmax(x, dim=axis)

def _gelu(x):
    return torch.nn.functional.gelu(x, approximate='tanh')

def _silu(x):
    return torch.nn.functional.silu(x)

def _sigmoid(x):
    return torch.sigmoid(x)

def _layernorm(x, axis=-1, eps=1e-05):
    m = x.mean(dim=axis, keepdim=True)
    v = x.var(dim=axis, keepdim=True, unbiased=False)
    return (x - m) / torch.sqrt(v + eps)

def _scatter_add(tgt, idx, src, axis=0):
    return tgt.clone().index_add_(axis, idx, src)

def _segment_sum(src, seg, n):
    out = torch.zeros((n,) + src.shape[1:], dtype=src.dtype)
    return out.index_add_(0, seg, src)

def _pad(x, pw):
    flat = tuple((v for pair in reversed(pw) for v in pair))
    return torch.nn.functional.pad(x, flat)
kernel_name = 'adaLN_cond__sliding_local_dilated__dense_activation_silu__prompt'

def setup_inputs():

    _w = lambda a: (lambda t: t.to(torch.bfloat16) if t.is_floating_point() else t)(torch.as_tensor(a))

    def _A_setup():
        B, S, D = (1, 2048, 512)
        return {'x': _w((lambda *s: torch.randn(*s, dtype=torch.bfloat16) * 0.05)(B, S, D)), 'wqkv': _w((lambda *s: torch.randn(*s, dtype=torch.bfloat16) * 0.05)(D, 3 * D)), 'wo': _w((lambda *s: torch.randn(*s, dtype=torch.bfloat16) * 0.05)(D, D))}
    _A_in = _A_setup()

    def _B_setup():
        B, S, D, F = (1, 2048, 512, 1376)
        return {'x': _w((lambda *s: torch.randn(*s, dtype=torch.bfloat16) * 0.05)(B, S, D)), 'w1': _w((lambda *s: torch.randn(*s, dtype=torch.bfloat16) * 3.2)(D, F) * D ** (-0.5)), 'w2': _w((lambda *s: torch.randn(*s, dtype=torch.bfloat16) * 0.4)(F, D) * F ** (-0.5))}
    _B_in = _B_setup()
    return {'A_x': _A_in['x'], 'A_wqkv': _A_in['wqkv'], 'A_wo': _A_in['wo'], 'B_x': _B_in['x'], 'B_w1': _B_in['w1'], 'B_w2': _B_in['w2'], 'c': _w((lambda *s: torch.randn(*s, dtype=torch.bfloat16) * 0.1)(1, 512) * 8.0), 'w_mod': _w((lambda *s: torch.randn(*s, dtype=torch.bfloat16) * 0.1)(512, 6 * 512) * 512 ** (-0.5) * 8.0)}

def reference(A_x, A_wqkv, A_wo, B_x, B_w1, B_w2, c, w_mod):

    def _A_ref(x, wqkv, wo):
        B, S, D = x.shape
        H = 32
        Dh = D // H
        W, dil = (8, 2)
        qkv = (lambda x, *d: x.permute(*d))((x @ wqkv).reshape(B, S, 3, H, Dh), 2, 0, 3, 1, 4)
        q, k, v = (qkv[0], qkv[1], qkv[2])
        scale = Dh ** (-0.5)
        pos = torch.arange(S)
        off = torch.arange(W) * dil
        idx = pos[:, None] - off[None, :]
        mask = idx >= 0
        idx_c = torch.where(mask, idx, 0).reshape(-1)
        kg = k[:, :, idx_c, :].reshape(B, H, S, W, Dh)
        vg = v[:, :, idx_c, :].reshape(B, H, S, W, Dh)
        logits = torch.einsum('bhsd,bhswd->bhsw', q, kg) * scale
        logits = torch.where(mask[None, None, :, :], logits, -1000000000.0)
        attn = _softmax(logits, axis=-1)
        o = torch.einsum('bhsw,bhswd->bhsd', attn, vg)
        return (lambda x, *d: x.permute(*d))(o, 0, 2, 1, 3).reshape(B, S, D) @ wo

    def _B_ref(x, w1, w2):
        h = torch.einsum('bsd,df->bsf', x, w1)
        h = _silu(h)
        out = torch.einsum('bsf,fd->bsd', h, w2)
        return out
    x = A_x
    mod = (_silu(c) @ w_mod).reshape(c.shape[0], 6, 1, -1)
    sa, ca, ga, sb, cb, gb = (mod[:, 0].clone(), mod[:, 1].clone(), mod[:, 2].clone(), mod[:, 3].clone(), mod[:, 4].clone(), mod[:, 5].clone())
    h = _layernorm(x, axis=-1) * (1 + ca) + sa
    x = x + ga * _A_ref(h, A_wqkv, A_wo)
    h = _layernorm(x, axis=-1) * (1 + cb) + sb
    x = x + gb * _B_ref(h, B_w1, B_w2)
    return x
```

```python
import re

TRANS = ('v_exp_f32', 'v_log_f32', 'v_rcp_f32', 'v_rsq_f32', 'v_sqrt_f32', 'v_sin_f32', 'v_cos_f32',
         'v_rcp_iflag_f32', 'v_exp_f16', 'v_rcp_f16')

def _regs(tok):
    tok = tok.strip()
    tok = tok.lstrip('-')
    m = re.fullmatch(r'abs\((.*)\)', tok)
    if m: tok = m.group(1)
    tok = tok.strip('|')
    m = re.fullmatch(r'([vas])(\d+)', tok)
    if m: return [(m.group(1), int(m.group(2)))]
    m = re.fullmatch(r'([vas])\[(\d+):(\d+)\]', tok)
    if m: return [(m.group(1), i) for i in range(int(m.group(2)), int(m.group(3)) + 1)]
    if tok == 'vcc': return [('x', 'vcc')]
    if tok in ('vcc_lo', 'vcc_hi'): return [('x', 'vcc')]
    if tok == 'exec': return [('x', 'exec')]
    if tok in ('exec_lo', 'exec_hi'): return [('x', 'exec')]
    if tok == 'm0': return [('x', 'm0')]
    return []

class Ins:
    __slots__ = ('text', 'op', 'kind', 'w', 'r', 'rc', 'rab', 'ws', 'passes', 'dpp', 'wide_store', 'lds_dma', 'data')

def parse(text):
    t = text.split(';')[0].strip()
    ins = Ins(); ins.text = text
    parts = t.split(None, 1)
    op = parts[0]; ins.op = op
    rest = parts[1] if len(parts) > 1 else ''
    ops = []; depth = 0; cur = ''
    for ch in rest:
        if ch in '[(': depth += 1
        if ch in '])': depth -= 1
        if ch == ',' and depth == 0:
            ops.append(cur); cur = ''
        else: cur += ch
    if cur.strip(): ops.append(cur)
    mods = ''
    if ops:
        last = ops[-1].strip().split(None, 1)
        ops[-1] = last[0]
        if len(last) > 1: mods = last[1]
    ins.w = set(); ins.r = set(); ins.rc = set(); ins.rab = set(); ins.ws = 1; ins.passes = 0
    ins.dpp = False; ins.wide_store = False; ins.lds_dma = False; ins.data = set()
    R = [_regs(o) for o in ops]
    if op == 's_nop':
        ins.kind = 'nop'; ins.ws = int(ops[0], 0) + 1; return ins
    if op.startswith('v_mfma'):
        ins.kind = 'mfma'
        ins.w = set(R[0]); ins.rab = set(R[1]) | set(R[2]); ins.rc = set(R[3]); ins.r = ins.rab | ins.rc
        ins.passes = 8 if '32x32x16' in op or '32x32x8' in op else 4
        return ins
    if op.startswith('v_'):
        ins.kind = 'trans' if op.replace('_e32', '').replace('_e64', '') in TRANS else 'valu'
        ins.dpp = ('_dpp' in op) or ('row_' in mods) or ('quad_perm' in mods)
        if op.startswith('v_permlane') and 'swap' in op:
            ins.kind = 'permlane'
            ins.w = set(R[0]) | set(R[1]); ins.r = set(ins.w); return ins
        if op.startswith('v_readfirstlane') or op.startswith('v_readlane'):
            ins.kind = 'readlane'
            ins.w = set(R[0]); ins.r = set(x for r in R[1:] for x in r); return ins
        if op.startswith('v_cmpx'):
            ins.w = set(R[0]) | {('x', 'exec')}; ins.r = set(x for r in R[1:] for x in r); return ins
        if '_co_' in op or op.startswith('v_div_scale') or op.startswith('v_mad_u64') or op.startswith('v_mad_i64'):
            ins.w = set(R[0]) | set(R[1]); ins.r = set(x for r in R[2:] for x in r); return ins
        ins.w = set(R[0]); ins.r = set(x for r in R[1:] for x in r)
        if op.startswith('v_fmac') or op.startswith('v_dot2c') or op.startswith('v_pk_fmac') or ins.dpp or op.startswith('v_writelane'):
            ins.r |= set(R[0])
        if op in ('v_nop',): ins.w = set(); ins.r = set()
        return ins
    if op.startswith('buffer_') or op.startswith('global_') or op.startswith('flat_'):
        ins.kind = 'vmem'
        allr = set(x for r in R for x in r)
        if op in ('buffer_inv', 'buffer_wbl2'):
            return ins
        is_lds = bool(re.search(r'\blds\b', mods)) or 'load_lds' in op
        if 'load' in op and not is_lds:
            ins.w = set(R[0]); ins.r = set(x for r in R[1:] for x in r)
        elif 'load' in op and is_lds:
            ins.r = allr | {('x', 'm0')}; ins.lds_dma = True
        elif 'atomic' in op:
            ins.r = allr
            if re.search(r'\bsc0\b', mods): ins.w = set(R[0])
        else:
            ins.r = allr
            if 'x4' in op or 'x3' in op:
                ins.wide_store = True
                ins.data = set(R[0]) if op.startswith('buffer_') else set(R[1])
        return ins
    if op.startswith('ds_'):
        ins.kind = 'ds'
        if 'read' in op or 'permute' in op or 'swizzle' in op or '_rtn' in op:
            ins.w = set(R[0]); ins.r = set(x for r in R[1:] for x in r)
        else:
            ins.r = set(x for r in R for x in r)
        return ins
    if op.startswith('s_'):
        ins.kind = 'salu'
        if op.startswith('s_load') or op.startswith('s_buffer_load') or op.startswith('s_memtime') or op.startswith('s_memrealtime'):
            ins.kind = 'smem'; ins.w = set(R[0]); ins.r = set(x for r in R[1:] for x in r); return ins
        if op.startswith('s_cmp') or op.startswith('s_bitcmp') or op in ('s_waitcnt', 's_barrier', 's_endpgm', 's_sleep', 's_setprio', 's_branch') or op.startswith('s_cbranch'):
            ins.r = set(x for r in R for x in r); return ins
        ins.w = set(R[0]) if R else set(); ins.r = set(x for r in R[1:] for x in r)
        if 'saveexec' in op: ins.w |= {('x', 'exec')}
        return ins
    raise ValueError('unknown instruction ' + text)

XDL_TO_VALU = {4: 8, 8: 12}
XDL_TO_AB = {4: 8, 8: 12}
XDL_TO_C_OVL = {4: 6, 8: 10}
XDL_C_WAR = {4: 3, 8: 7}
VALUK = ('valu', 'trans', 'permlane', 'readlane')

def need(p, c):
    n = 0
    pv = p.kind in VALUK
    cv = c.kind in VALUK
    if p.kind == 'mfma':
        if c.kind == 'mfma':
            if p.w & c.rab: n = max(n, XDL_TO_AB[p.passes])
            if p.w & c.rc:
                if not (p.w == c.rc and p.passes == c.passes): n = max(n, XDL_TO_C_OVL[p.passes])
            if (p.w & c.w) and not (p.w == c.rc and p.passes == c.passes): n = max(n, XDL_TO_C_OVL[p.passes])
        elif cv or c.kind in ('vmem', 'ds'):
            if p.w & (c.r | c.w): n = max(n, XDL_TO_VALU[p.passes])
        if cv and (p.rc & c.w): n = max(n, XDL_C_WAR[p.passes])
    if pv:
        vw = set(x for x in p.w if x[0] in 'va')
        sw = set(x for x in p.w if x[0] == 's' or x == ('x', 'vcc'))
        if c.kind == 'mfma' and (vw & c.r): n = max(n, 2)
        if c.kind == 'mfma' and ('x', 'exec') in p.w: n = max(n, 4)
        if c.kind == 'permlane' and (vw & c.r): n = max(n, 2)
        if c.kind == 'readlane' and (vw & c.r): n = max(n, 1)
        if c.kind == 'readlane' and (sw & c.r): n = max(n, 4)
        if cv and c.dpp and (vw & c.r): n = max(n, 2)
        if cv and (sw & c.r): n = max(n, 2)
        if c.kind == 'vmem' and (sw & c.r): n = max(n, 5)
        if c.kind == 'salu' and (sw & c.r): n = max(n, 1)
        if p.kind == 'trans' and cv and c.kind != 'trans' and (vw & c.r): n = max(n, 1)
        if p.kind == 'trans' and c.kind in ('mfma',) and (vw & c.r): n = max(n, 2)
        if ('x', 'exec') in p.w:
            if cv and c.dpp: n = max(n, 5)
            if c.kind in ('readlane', 'permlane'): n = max(n, 4)
    if p.op.startswith('v_dot') and c.op != p.op and (p.w & (c.r | c.w)): n = max(n, 3)
    if p.kind == 'vmem' and p.wide_store:
        if p.data & c.w: n = max(n, 2)
    if p.kind == 'salu' and ('x', 'm0') in p.w:
        if c.lds_dma: n = max(n, 1)
    return n

class Asm:
    def __init__(self):
        self.lines = []
        self.hist = []
        self.nins = 0
    def raw(self, text):
        self.lines.append(text)
    def comment(self, text):
        self.lines.append('    ; ' + text)
    def label(self, name):
        self.lines.append(name + ':')
    def __call__(self, text):
        for t in text.strip().split('\n'):
            t = t.strip()
            if not t or t.startswith(';'): continue
            self._emit(t)
    def _emit(self, text):
        c = parse(text)
        dist = 0; pad = 0
        for p in reversed(self.hist):
            if dist >= 20: break
            n = need(p, c)
            if n > dist: pad = max(pad, n - dist)
            dist += p.ws
        while pad > 0:
            k = min(pad, 16)
            nop = parse('s_nop %d' % (k - 1))
            self.lines.append('    s_nop %d' % (k - 1)); self.hist.append(nop); pad -= k; self.nins += 1
        self.lines.append('    ' + text); self.hist.append(c); self.nins += 1
        if len(self.hist) > 64: self.hist = self.hist[-40:]
    def drain(self, n=12):
        dist = 0; pad = 0
        for p in reversed(self.hist):
            if dist >= 20: break
            w = 0
            if p.kind == 'mfma': w = XDL_TO_VALU[p.passes]
            elif p.kind in VALUK: w = 5
            elif p.kind == 'vmem' and p.wide_store: w = 2
            elif p.kind == 'salu': w = 1
            if w > dist: pad = max(pad, w - dist)
            dist += p.ws
        if pad > 0:
            self._emit('s_nop %d' % (pad - 1))
    def branch(self, text):
        self.drain()
        self._emit(text)
    def text(self):
        return '\n'.join(self.lines) + '\n'

def vr(a, n=1, c='v'):
    return '%s%d' % (c, a) if n == 1 else '%s[%d:%d]' % (c, a, a + n - 1)
def ar(a, n=1): return vr(a, n, 'a')
def sr(a, n=1): return vr(a, n, 's')
```

```python
MOD = 0x0000
CS1 = 0x4000
UBU = 0x8000
UBB = 0xA000
ST  = 0x40000
XH  = 0x100000
OB  = 0x300000
X1  = 0x500000
HID = 0x700000
WQF = 0xD00000
WOF = 0xF00000
W1F = 0x1000000
W2F = 0x1200000
WS_USED = 0x1400000
LOG2E = 1.4426950408889634
LN2 = 0.6931471805599453
import struct
def f32(x): return '0x%08x' % struct.unpack('<I', struct.pack('<f', x))[0]
```

```python
import sys
from asmlib import *
from layout import *

NAME = 'adaLN_cond__sliding_local_dilated__dense_activation_silu__prompt'
A = Asm()
kernels = []

def kstart(name):
    A.raw('.globl %s\n.p2align 8\n.type %s,@function\n%s:' % (name, name, name))
    A.hist = []

def load_args(nwg, endlabel):
    A('s_cmp_ge_u32 s2, %d' % nwg)
    A('s_cbranch_scc1 %s' % endlabel)
    A('s_load_dwordx16 s[4:19], s[0:1], 0')
    A('s_load_dwordx4 s[20:23], s[0:1], 64')
    A('s_load_dwordx2 s[24:25], s[0:1], 80')
    A('v_and_b32 v1, 63, v0')
    A('v_lshrrev_b32 v2, 6, v0')
    A('v_readfirstlane_b32 s3, v2')
    A('s_waitcnt lgkmcnt(0)')
    srd(28, 24, WS_USED)

def srd(d, p, nbytes):
    A('s_mov_b32 s%d, s%d' % (d, p))
    A('s_and_b32 s%d, s%d, 0xffff' % (d + 1, p + 1))
    A('s_mov_b32 s%d, 0x%x' % (d + 2, nbytes))
    A('s_mov_b32 s%d, 0x00020000' % (d + 3))

def wave_sum(regs, tmps):
    for sh in (1, 2, 4, 8):
        for r in regs:
            A('v_add_f32_dpp v%d, v%d, v%d row_ror:%d row_mask:0xf bank_mask:0xf' % (r, r, r, sh))
    for op in ('v_permlane16_swap_b32', 'v_permlane32_swap_b32'):
        for r, t in zip(regs, tmps): A('v_mov_b32 v%d, v%d' % (t, r))
        for r, t in zip(regs, tmps): A('%s v%d, v%d' % (op, r, t))
        for r, t in zip(regs, tmps): A('v_add_f32 v%d, v%d, v%d' % (r, r, t))

def unpack8(dst, src):
    for d in range(4):
        A('v_lshlrev_b32 v%d, 16, v%d' % (dst + 2 * d, src + d))
        A('v_and_b32 v%d, 0xffff0000, v%d' % (dst + 2 * d + 1, src + d))

def bf16_round(r):
    A('v_cvt_pk_bf16_f32 v%d, v%d, v%d' % (r, r, r))
    A('v_lshlrev_b32 v%d, 16, v%d' % (r, r))

def gen_k0():
    kstart('k0_kernel')
    load_args(256, 'k0_end')
    srd(32, 4, 2048 * 512 * 2)
    srd(36, 18, 512 * 3072 * 2)
    srd(40, 16, 1024)
    A('s_lshr_b32 s50, s2, 2')
    A('s_and_b32 s51, s2, 3')
    A('s_lshl_b32 s51, s51, 3')
    A('s_lshl_b32 s52, s3, 1')
    A('s_add_u32 s51, s51, s52')
    A('s_lshr_b32 s52, s50, 1')
    A('s_lshl_b32 s52, s52, 6')
    A('s_and_b32 s53, s50, 1')
    A('s_add_u32 s52, s52, s53')
    A('s_lshl_b32 s53, s51, 1')
    A('s_add_u32 s52, s52, s53')
    A('s_lshl_b32 s52, s52, 10')
    A('v_lshlrev_b32 v3, 4, v1')
    A('buffer_load_dwordx4 v[10:13], v3, s[32:35], s52 offen')
    A('buffer_load_dwordx4 v[14:17], v3, s[32:35], s52 offen offset:2048')
    A('s_cmp_ge_u32 s2, 192')
    A.branch('s_cbranch_scc1 k0_noM1')
    A('v_lshrrev_b32 v4, 1, v0')
    A('v_and_b32 v5, 1, v0')
    A('v_mul_u32_u24 v6, %d, v4' % (4 * 6144))
    A('v_lshl_add_u32 v6, v5, 4, v6')
    A('s_lshl_b32 s54, s2, 5')
    A('v_lshlrev_b32 v7, 3, v4')
    A('buffer_load_dwordx2 v[36:37], v7, s[40:43], 0 offen')
    for r in range(4):
        A('s_add_u32 s55, s54, %d' % (r * 6144))
        A('buffer_load_dwordx4 v[%d:%d], v6, s[36:39], s55 offen' % (20 + 4 * r, 23 + 4 * r))
    A.label('k0_noM1')
    A('s_cmp_lt_u32 s2, 144')
    A.branch('s_cbranch_scc1 k0_noW1')
    A('s_sub_u32 s56, s2, 144')
    A('s_cmp_ge_u32 s56, 48')
    A.branch('s_cbranch_scc1 k0_w_not_qkv')
    A('s_mul_hi_u32 s57, s56, 0x55555556')
    A('s_mul_i32 s58, s57, 3')
    A('s_sub_u32 s58, s56, s58')
    srd(44, 6, 512 * 1536 * 2)
    A('s_lshl_b32 s60, s58, 10')
    A('s_lshl_b32 s59, s57, 6')
    A('s_add_u32 s60, s60, s59')
    A('s_mov_b32 s61, 3072')
    A('s_mul_i32 s62, s57, %d' % (32 * 3072))
    A('s_lshl_b32 s59, s58, 10')
    A('s_add_u32 s62, s62, s59')
    A('s_add_u32 s62, s62, 0x%x' % WQF)
    A('s_mov_b32 s63, 3072')
    A('s_mov_b32 s64, 0')
    A('s_mov_b32 s65, 64')
    A.branch('s_branch k0_w_go')
    A.label('k0_w_not_qkv')
    A('s_cmp_ge_u32 s56, 64')
    A.branch('s_cbranch_scc1 k0_w_w2')
    A('s_sub_u32 s57, s56, 48')
    srd(44, 8, 512 * 512 * 2)
    A('s_lshl_b32 s60, s57, 6')
    A('s_mov_b32 s61, 1024')
    A('s_lshl_b32 s62, s57, 15')
    A('s_add_u32 s62, s62, 0x%x' % WOF)
    A('s_mov_b32 s63, 1024')
    A('s_mov_b32 s64, 0')
    A('s_mov_b32 s65, 64')
    A.branch('s_branch k0_w_go')
    A.label('k0_w_w2')
    A('s_sub_u32 s56, s56, 64')
    A('s_mul_hi_u32 s57, s56, 0x55555556')
    A('s_mul_i32 s58, s57, 3')
    A('s_sub_u32 s58, s56, s58')
    srd(44, 14, 1376 * 512 * 2)
    A('s_lshl_b32 s60, s57, 6')
    A('s_mov_b32 s61, 1024')
    A('s_mul_i32 s62, s57, %d' % (86 * 1024))
    A('s_add_u32 s62, s62, 0x%x' % W2F)
    A('s_mov_b32 s63, 1024')
    A('s_lshl_b32 s64, s58, 6')
    A('s_mov_b32 s65, 172')
    A.label('k0_w_go')
    A('v_lshrrev_b32 v8, 2, v0')
    A('v_add_u32 v8, s64, v8')
    A('v_and_b32 v9, 3, v0')
    A('s_lshl_b32 s59, s61, 3')
    A('v_mul_lo_u32 v18, v8, s59')
    A('v_lshl_add_u32 v18, v9, 4, v18')
    A('s_mov_b32 s59, s60')
    for r in range(8):
        A('buffer_load_dwordx4 v[%d:%d], v18, s[44:47], s59 offen' % (40 + 4 * r, 43 + 4 * r))
        if r < 7: A('s_add_u32 s59, s59, s61')
    A.label('k0_noW1')
    A('s_waitcnt vmcnt(0)')
    unpack8(80, 10); unpack8(88, 14)
    for base, acc in ((80, 96), (88, 97)):
        A('v_add_f32 v%d, v%d, v%d' % (acc, base, base + 1))
        for j in range(2, 8): A('v_add_f32 v%d, v%d, v%d' % (acc, acc, base + j))
    wave_sum([96, 97], [98, 99])
    A('v_mul_f32 v96, %s, v96' % f32(-1.0 / 512)); A('v_mul_f32 v97, %s, v97' % f32(-1.0 / 512))
    for base, m in ((80, 96), (88, 97)):
        for j in range(8): A('v_add_f32 v%d, v%d, v%d' % (base + j, base + j, m))
    for base, acc in ((80, 96), (88, 97)):
        A('v_mul_f32 v%d, v%d, v%d' % (acc, base, base))
        for j in range(1, 8): A('v_fmac_f32 v%d, v%d, v%d' % (acc, base + j, base + j))
    wave_sum([96, 97], [98, 99])
    A('v_mov_b32 v98, %s' % f32(1e-5))
    A('s_mov_b32 s59, %s' % f32(1.0 / 512))
    A('v_fma_f32 v96, v96, s59, v98'); A('v_fma_f32 v97, v97, s59, v98')
    A('v_rsq_f32 v96, v96'); A('v_rsq_f32 v97, v97')
    for base, m in ((80, 96), (88, 97)):
        for j in range(8): A('v_mul_f32 v%d, v%d, v%d' % (base + j, base + j, m))
    for base, dst in ((80, 100), (88, 104)):
        for d in range(4): A('v_cvt_pk_f16_f32 v%d, v%d, v%d' % (dst + d, base + 2 * d, base + 2 * d + 1))
    A('v_lshrrev_b32 v98, 1, v1'); A('v_lshlrev_b32 v98, 10, v98')
    A('v_and_b32 v99, 1, v1'); A('v_lshl_add_u32 v98, v99, 9, v98')
    A('s_lshl_b32 s59, s50, 15'); A('s_lshl_b32 s52, s51, 4'); A('s_add_u32 s59, s59, s52'); A('s_add_u32 s59, s59, 0x%x' % XH)
    A('buffer_store_dwordx4 v[100:103], v98, s[28:31], s59 offen')
    A('buffer_store_dwordx4 v[104:107], v98, s[28:31], s59 offen offset:16')
    A('s_cmp_lt_u32 s2, 144')
    A.branch('s_cbranch_scc1 k0_noW2')
    A('v_cmp_gt_u32 vcc, s65, v8')
    A('s_and_saveexec_b64 s[66:67], vcc')
    A.branch('s_cbranch_execz k0_w_done')
    A('s_mov_b32 s68, 0x05040100'); A('s_mov_b32 s69, 0x07060302')
    for d in range(4):
        for e in range(2):
            for m in range(4):
                A('v_perm_b32 v%d, v%d, v%d, s%d' % (112 + 4 * (2 * d + e) + m, 40 + 4 * (2 * m + 1) + d, 40 + 4 * (2 * m) + d, 68 + e))
    A('v_lshrrev_b32 v18, 1, v8'); A('v_mul_lo_u32 v18, v18, s63')
    A('v_and_b32 v19, 1, v8'); A('v_lshl_add_u32 v18, v19, 9, v18')
    A('v_lshrrev_b32 v19, 1, v9'); A('v_lshl_add_u32 v18, v19, 8, v18')
    A('v_and_b32 v19, 1, v9'); A('v_lshl_add_u32 v18, v19, 6, v18')
    for f in range(8):
        A('buffer_store_dwordx4 v[%d:%d], v18, s[28:31], s62 offen offset:%d' % (112 + 4 * f, 115 + 4 * f, (f >> 2) * 128 + (f & 3) * 16))
    A.label('k0_w_done')
    A('s_mov_b64 exec, s[66:67]')
    A.label('k0_noW2')
    A('s_cmp_ge_u32 s2, 192')
    A.branch('s_cbranch_scc1 k0_end')
    A('v_lshlrev_b32 v80, 16, v36'); A('v_and_b32 v81, 0xffff0000, v36')
    A('v_lshlrev_b32 v82, 16, v37'); A('v_and_b32 v83, 0xffff0000, v37')
    for r in range(4): A('v_mul_f32 v%d, %s, v%d' % (84 + r, f32(-LOG2E), 80 + r))
    for r in range(4): A('v_exp_f32 v%d, v%d' % (84 + r, 84 + r))
    for r in range(4): A('v_add_f32 v%d, 1.0, v%d' % (84 + r, 84 + r))
    for r in range(4): A('v_rcp_f32 v%d, v%d' % (84 + r, 84 + r))
    for r in range(4): A('v_mul_f32 v%d, v%d, v%d' % (80 + r, 80 + r, 84 + r))
    for r in range(4): bf16_round(80 + r)
    for r in range(4):
        unpack8(88, 20 + 4 * r)
        for j in range(8):
            if r == 0: A('v_mul_f32 v%d, v%d, v%d' % (96 + j, 80 + r, 88 + j))
            else: A('v_fmac_f32 v%d, v%d, v%d' % (96 + j, 80 + r, 88 + j))
    for sh in (2, 4, 8):
        for j in range(8):
            A('v_add_f32_dpp v%d, v%d, v%d row_ror:%d row_mask:0xf bank_mask:0xf' % (96 + j, 96 + j, 96 + j, sh))
    A('v_lshrrev_b32 v88, 4, v0'); A('v_lshlrev_b32 v88, 6, v88'); A('v_lshl_add_u32 v88, v5, 5, v88')
    A('s_mov_b32 s66, 0x00030003'); A('s_mov_b32 s67, 0x00030003')
    A('s_mov_b64 exec, s[66:67]')
    A('ds_write_b128 v88, v[96:99]'); A('ds_write_b128 v88, v[100:103] offset:16')
    A('s_mov_b64 exec, -1')
    A('s_waitcnt lgkmcnt(0)')
    A('s_barrier')
    A('s_cmp_lg_u32 s3, 0')
    A.branch('s_cbranch_scc1 k0_end')
    A('v_and_b32 v88, 15, v1'); A('v_lshlrev_b32 v89, 2, v88')
    for g in range(16): A('ds_read_b32 v%d, v89 offset:%d' % (96 + g, g * 64))
    A('s_waitcnt lgkmcnt(0)')
    for st in (8, 4, 2, 1):
        for g in range(st): A('v_add_f32 v%d, v%d, v%d' % (96 + g, 96 + g, 96 + g + st))
    bf16_round(96)
    A('s_lshr_b32 s59, s2, 5')
    A('s_cmp_eq_u32 s59, 1'); A('s_cselect_b32 s60, 1.0, 0')
    A('s_cmp_eq_u32 s59, 4'); A('s_cselect_b32 s60, 1.0, s60')
    A('v_add_f32 v96, s60, v96')
    bf16_round(96)
    A('s_mov_b64 exec, 0xffff')
    A('s_lshl_b32 s60, s2, 6')
    A('buffer_store_dword v96, v89, s[28:31], s60 offen')
    A('s_cmp_ge_u32 s59, 2')
    A.branch('s_cbranch_scc1 k0_end')
    A('s_and_b32 s60, s2, 31'); A('s_lshl_b32 s60, s60, 7')
    A('s_xor_b32 s59, s59, 1'); A('s_lshl_b32 s59, s59, 5'); A('s_add_u32 s60, s60, s59'); A('s_add_u32 s60, s60, 0x%x' % CS1)
    A('v_lshrrev_b32 v90, 3, v88'); A('v_lshlrev_b32 v90, 6, v90'); A('v_and_b32 v91, 7, v88'); A('v_lshl_add_u32 v90, v91, 2, v90')
    A('buffer_store_dword v96, v90, s[28:31], s60 offen')
    A.label('k0_end')
    A('s_endpgm')
    kernels.append(('k0_kernel', 256, 256, 1024, 144, 144))

L_W = 0; L_CS = 98304; L_HP = L_CS + 4096; L_EX = L_HP + 4 * 6144
K1_LDS = L_EX + 4 * 3072
def gen_k1():
    kstart('k1_kernel')
    load_args(256, 'k1_end')
    A('s_and_b32 s32, s2, 7'); A('s_lshl_b32 s32, s32, 1'); A('s_bfe_u32 s33, s2, 0x10003'); A('s_add_u32 s32, s32, s33')
    A('s_lshr_b32 s33, s2, 4')
    A('s_lshl_b32 s34, s32, 2'); A('s_add_u32 s34, s34, s3')
    A('v_lshlrev_b32 v2, 4, v1')
    A('s_mul_i32 s35, s33, %d' % (96 * 1024)); A('s_add_u32 s35, s35, 0x%x' % WQF)
    A('s_mul_i32 s36, s3, %d' % (24 * 1024))
    A('s_add_u32 s35, s35, s36')
    for i in range(24):
        if i % 4 == 0:
            A('s_add_u32 s37, s36, %d' % (i * 1024)); A('s_mov_b32 m0, s37')
            A('s_add_u32 s37, s35, %d' % (i * 1024))
        A('buffer_load_dwordx4 v2, s[28:31], s37 offen offset:%d lds' % ((i % 4) * 1024))
    A('s_lshl_b32 s36, s3, 10'); A('s_add_u32 s37, s36, %d' % L_CS); A('s_mov_b32 m0, s37')
    A('s_add_u32 s37, s36, 0x%x' % CS1)
    A('buffer_load_dwordx4 v2, s[28:31], s37 offen lds')
    A('s_lshl_b32 s36, s34, 15'); A('s_add_u32 s36, s36, 0x%x' % XH)
    for qd in range(4):
        A('s_add_u32 s37, s3, %d' % qd); A('s_and_b32 s37, s37, 3'); A('s_lshl_b32 s37, s37, 13')
        A('s_add_u32 s%d, s36, s37' % (74 + 2 * qd)); A('s_add_u32 s%d, s%d, 4096' % (75 + 2 * qd, 74 + 2 * qd))
    A('s_lshl_b32 s37, s3, 13'); A('s_add_u32 s82, s37, 0x%x' % XH); A('s_add_u32 s83, s82, 4096')
    A('s_lshl_b32 s37, s32, 2'); A('s_sub_u32 s37, s37, 2'); A('s_cmp_eq_u32 s32, 0'); A('s_cselect_b32 s37, 0, s37')
    A('v_bfe_u32 v3, v1, 3, 1'); A('v_xor_b32 v3, 1, v3'); A('v_add_u32 v3, s37, v3'); A('v_lshlrev_b32 v3, 15, v3')
    A('v_and_b32 v4, 0x27, v1'); A('v_add_u32 v4, 24, v4'); A('v_lshl_add_u32 v3, v4, 4, v3')
    seq = []
    for s in range(8): seq += [('m', s), ('h', s)]
    for s in range(8, 32): seq.append(('m', s))
    RING = 20; RB = 96
    idx_of = {k: i for i, k in enumerate(seq)}
    issued = [0]
    def issue_next():
        i = issued[0]
        if i >= len(seq): return
        kind, s = seq[i]; reg = RB + 4 * (i % RING)
        if kind == 'm':
            A('buffer_load_dwordx4 v[%d:%d], v2, s[28:31], s%d offen offset:%d' % (reg, reg + 3, 74 + (s >> 2), (s & 3) * 1024))
        else:
            A('buffer_load_dwordx4 v[%d:%d], v3, s[28:31], s%d offen offset:%d' % (reg, reg + 3, 82 + (s >> 2), (s & 3) * 1024))
        issued[0] += 1
    for i in range(RING): issue_next()
    A('v_lshrrev_b32 v12, 5, v1')
    A('v_lshlrev_b32 v13, 6, v12')
    for qd in range(4):
        A('s_add_u32 s37, s3, %d' % qd); A('s_and_b32 s37, s37, 3')
        A('s_mul_i32 s38, s37, 24576'); A('v_add_u32 v%d, s38, v2' % (4 + qd))
        A('s_lshl_b32 s38, s37, 10'); A('s_add_u32 s38, s38, %d' % L_CS); A('v_add_u32 v%d, s38, v13' % (8 + qd))
    for b in range(4):
        for c in range(4):
            m = 0
            for l in range(64):
                q = l & 31; hi = l >> 5
                if q - 4 * hi - c >= 8 * b: m |= 1 << l
            A('s_mov_b32 s%d, 0x%x' % (40 + 2 * (4 * b + c), m & 0xffffffff))
            A('s_mov_b32 s%d, 0x%x' % (41 + 2 * (4 * b + c), m >> 32))
    A('s_lshr_b32 s37, s3, 1'); A('s_or_b32 s37, s37, s32'); A('s_cmp_eq_u32 s37, 0'); A('s_cselect_b32 s72, -1, 0'); A('s_mov_b32 s73, s72')
    NM = 228
    A('v_and_b32 v14, 31, v1'); A('v_lshlrev_b32 v15, 2, v12'); A('v_sub_u32 v14, v14, v15'); A('v_add_u32 v14, 8, v14')
    for c in range(4):
        A('v_subrev_u32 v%d, %d, v14' % (208 + c, c));
    for c in range(4):
        A('v_lshrrev_b32 v%d, 3, v%d' % (208 + c, 208 + c))
    A('v_mov_b32 v212, 0xffff'); A('v_mov_b32 v213, 0xffff0000')
    for b1 in range(5):
        for pr in range(2):
            A('v_cmp_eq_u32 vcc, %d, v%d' % (b1, 208 + 2 * pr))
            A('v_cndmask_b32 v214, 0, v212, vcc')
            A('v_cmp_eq_u32 vcc, %d, v%d' % (b1, 208 + 2 * pr + 1))
            A('v_cndmask_b32 v215, 0, v213, vcc')
            A('v_or_b32 v%d, v214, v215' % (NM + 2 * b1 + pr))
    A('s_waitcnt vmcnt(%d)' % RING)
    A('s_barrier')
    TQ, TK, TV, HK, HV = 16, 32, 48, 64, 80
    CSB = 176; TMP = 208; HF = 216; HH = 224
    def rd_w(s):
        for t in range(3):
            A('ds_read_b128 a[%d:%d], v%d offset:%d' % (12 * (s & 1) + 4 * t, 12 * (s & 1) + 4 * t + 3, 4 + (s >> 3), ((s & 7) * 3 + t) * 1024))
    def rd_cs(s):
        for i in range(4):
            A('ds_read_b128 v[%d:%d], v%d offset:%d' % (CSB + 16 * (s & 1) + 4 * i, CSB + 16 * (s & 1) + 4 * i + 3, 8 + (s >> 3), (s & 7) * 128 + 16 * i))
    def mod_ops(kind, s, dst):
        i = idx_of[(kind, s)]; reg = RB + 4 * (i % RING); cs = CSB + 16 * (s & 1)
        ops = []
        for j in range(8):
            ops.append('v_fma_mix_f32 v%d, v%d, v%d, v%d op_sel:[%d,0,0] op_sel_hi:[1,0,0]' % (TMP + j, reg + (j >> 1), cs + j, cs + 8 + j, j & 1))
        for d in range(4):
            ops.append('v_cvt_pk_bf16_f32 v%d, v%d, v%d' % (dst + d, TMP + 2 * d, TMP + 2 * d + 1))
        return ops, i
    def wait_load(i):
        A('s_waitcnt vmcnt(%d)' % (issued[0] - 1 - i))
    rd_w(0); rd_cs(0); rd_cs(1)
    A('s_waitcnt lgkmcnt(4)')
    ops, i = mod_ops('m', 0, HF); wait_load(i)
    for o in ops: A(o)
    issue_next()
    HHB = [224, 238]
    ops, i = mod_ops('h', 0, HHB[0]); wait_load(i)
    for o in ops: A(o)
    issue_next()
    for s in range(32):
        wb = 12 * (s & 1); h = HF + 4 * (s & 1); hn = HF + 4 * ((s + 1) & 1)
        c0 = (lambda r: '0' if s == 0 else vr(r, 16))
        A('s_waitcnt lgkmcnt(0)')
        mf = ['v_mfma_f32_32x32x16_bf16 %s, a[%d:%d], v[%d:%d], %s' % (vr(TQ, 16), wb, wb + 3, h, h + 3, c0(TQ)),
              'v_mfma_f32_32x32x16_bf16 %s, a[%d:%d], v[%d:%d], %s' % (vr(TK, 16), wb + 4, wb + 7, h, h + 3, c0(TK)),
              'v_mfma_f32_32x32x16_bf16 %s, v[%d:%d], a[%d:%d], %s' % (vr(TV, 16), h, h + 3, wb + 8, wb + 11, c0(TV))]
        if s < 8:
            hh = HHB[s & 1]
            mf += ['v_mfma_f32_32x32x16_bf16 %s, a[%d:%d], v[%d:%d], %s' % (vr(HK, 16), wb + 4, wb + 7, hh, hh + 3, c0(HK)),
                   'v_mfma_f32_32x32x16_bf16 %s, v[%d:%d], a[%d:%d], %s' % (vr(HV, 16), hh, hh + 3, wb + 8, wb + 11, c0(HV))]
        A(mf[0])
        if s + 1 < 32: rd_w(s + 1)
        if s + 2 < 32: rd_cs(s + 2)
        A(mf[1])
        if s + 1 < 32:
            ops, i = mod_ops('m', s + 1, hn); wait_load(i)
            for o in ops[:6]: A(o)
            A(mf[2])
            for o in ops[6:]: A(o)
            issue_next()
        else:
            A(mf[2])
        if s < 8:
            A(mf[3])
            if s + 1 < 8:
                ops, i = mod_ops('h', s + 1, HHB[(s + 1) & 1]); wait_load(i)
                for o in ops[:6]: A(o)
                A(mf[4])
                for o in ops[6:]: A(o)
                issue_next()
            else:
                A(mf[4])
    QF = [96, 100]; KF = [104, 108]; VF = [112, 116]; KP = [120, 124]; VP = 128
    A('s_mul_i32 s37, s3, 6144'); A('s_add_u32 s37, s37, %d' % L_HP); A('v_add_u32 v14, s37, v2')
    for i in range(4): A('ds_write_b128 v14, v[%d:%d] offset:%d' % (HK + 4 * i, HK + 4 * i + 3, 1024 * i))
    for i in range(2): A('ds_write_b128 v14, v[%d:%d] offset:%d' % (HV + 8 + 4 * i, HV + 8 + 4 * i + 3, 4096 + 1024 * i))
    for X in range(2):
        for d in range(4): A('v_cvt_pk_bf16_f32 v%d, v%d, v%d' % (QF[X] + d, TQ + 8 * X + 2 * d, TQ + 8 * X + 2 * d + 1))
    for X in range(2):
        for d in range(4): A('v_cvt_pk_bf16_f32 v%d, v%d, v%d' % (KF[X] + d, TK + 8 * X + 2 * d, TK + 8 * X + 2 * d + 1))
    for X in range(2):
        for d in range(4): A('v_cvt_pk_bf16_f32 v%d, v%d, v%d' % (VF[X] + d, TV + 8 * X + 2 * d, TV + 8 * X + 2 * d + 1))
    A('s_mul_i32 s37, s3, 3072'); A('s_add_u32 s37, s37, %d' % L_EX); A('v_add_u32 v15, s37, v2')
    A('ds_write_b128 v15, v[%d:%d]' % (KF[0], KF[0] + 3))
    A('ds_write_b128 v15, v[%d:%d] offset:1024' % (KF[1], KF[1] + 3))
    A('ds_write_b128 v15, v[%d:%d] offset:2048' % (VF[1], VF[1] + 3))
    SC = [16, 32]; SP = [48, 64]; OO = [80, 132]
    for X in range(2):
        A('v_mfma_f32_32x32x16_bf16 %s, v[%d:%d], v[%d:%d], 0' % (vr(SC[X], 16), KF[X], KF[X] + 3, QF[X], QF[X] + 3))
    A('s_waitcnt lgkmcnt(0)')
    A('s_barrier')
    A('s_cmp_ge_u32 s3, 2')
    A.branch('s_cbranch_scc1 k1_hi_waves')
    A('s_lshl_b32 s37, s3, 3'); A('v_subrev_u32 v14, s37, v1'); A('v_and_b32 v14, 31, v14'); A('v_and_b32 v15, 32, v1'); A('v_or_b32 v14, v14, v15')
    A('v_lshlrev_b32 v14, 4, v14'); A('v_add_u32 v14, %d, v14' % L_HP)
    A('s_xor_b32 s37, s3, 1'); A('s_lshl_b32 s37, s37, 10'); A('s_add_u32 s37, s37, %d' % (L_HP + 4096)); A('v_add_u32 v15, s37, v2')
    for p in range(4):
        for i in range(4): A('ds_read_b128 v[%d:%d], v14 offset:%d' % (148 + 16 * p + 4 * i, 148 + 16 * p + 4 * i + 3, 6144 * p + 1024 * i))
    for p in range(4): A('ds_read_b128 v[%d:%d], v15 offset:%d' % (212 + 4 * p, 212 + 4 * p + 3, 6144 * p))
    A('s_waitcnt lgkmcnt(0)')
    for r in range(16): A('v_add_f32 v%d, v%d, v%d' % (148 + r, 148 + r, 164 + r))
    for r in range(16): A('v_add_f32 v%d, v%d, v%d' % (180 + r, 180 + r, 196 + r))
    for r in range(16): A('v_add_f32 v%d, v%d, v%d' % (148 + r, 148 + r, 180 + r))
    for r in range(4): A('v_add_f32 v%d, v%d, v%d' % (212 + r, 212 + r, 216 + r))
    for r in range(4): A('v_add_f32 v%d, v%d, v%d' % (220 + r, 220 + r, 224 + r))
    for r in range(4): A('v_add_f32 v%d, v%d, v%d' % (212 + r, 212 + r, 220 + r))
    for X in range(2):
        for d in range(4): A('v_cvt_pk_bf16_f32 v%d, v%d, v%d' % (KP[X] + d, 148 + 8 * X + 2 * d, 148 + 8 * X + 2 * d + 1))
    for d in range(2): A('v_cvt_pk_bf16_f32 v%d, v%d, v%d' % (VP + 2 + d, 212 + 2 * d, 212 + 2 * d + 1))
    A.branch('s_branch k1_join')
    A.label('k1_hi_waves')
    A('v_subrev_u32 v15, 6144, v15')
    A('ds_read_b128 v[%d:%d], v15' % (KP[0], KP[0] + 3))
    A('ds_read_b128 v[%d:%d], v15 offset:1024' % (KP[1], KP[1] + 3))
    A('ds_read_b128 v[%d:%d], v15 offset:2048' % (VP, VP + 3))
    A('s_waitcnt lgkmcnt(0)')
    A.label('k1_join')
    A('v_mov_b32 v%d, 0' % VP); A('v_mov_b32 v%d, 0' % (VP + 1))
    for X in range(2):
        A('v_mfma_f32_32x32x16_bf16 %s, v[%d:%d], v[%d:%d], 0' % (vr(SP[X], 16), KP[X], KP[X] + 3, QF[X], QF[X] + 3))
    A('v_mov_b32 v148, %s' % f32(-4e9))
    A('s_mov_b32 s37, %s' % f32(0.25 * LOG2E))
    VAL = [152, 160]
    PB = [168, 184]
    for X in range(2):
        for c in range(4):
            A('v_cndmask_b32 v%d, v%d, v148, s[72:73]' % (VAL[X] + c, SP[X] + 12 + c))
        for b in range(4):
            for c in range(4):
                A('v_cndmask_b32 v%d, v%d, v%d, s[%d:%d]' % (VAL[X] + c, VAL[X] + c, SC[X] + 4 * b + c, 40 + 2 * (4 * b + c), 41 + 2 * (4 * b + c)))
    for X in range(2):
        v = VAL[X]
        A('v_max3_f32 v%d, v%d, v%d, v%d' % (v + 4, v, v + 1, v + 2)); A('v_max_f32 v%d, v%d, v%d' % (v + 4, v + 4, v + 3))
        A('v_mov_b32 v%d, v%d' % (v + 5, v + 4))
    for X in range(2):
        v = VAL[X]
        A('v_permlane32_swap_b32 v%d, v%d' % (v + 4, v + 5))
    for X in range(2):
        v = VAL[X]
        A('v_max_f32 v%d, v%d, v%d' % (v + 4, v + 4, v + 5))
        A('v_mul_f32 v%d, s37, v%d' % (v + 4, v + 4))
        for c in range(4): A('v_fma_f32 v%d, v%d, s37, -v%d' % (v + c, v + c, v + 4))
        for c in range(4): A('v_exp_f32 v%d, v%d' % (v + c, v + c))
    for X in range(2):
        v = VAL[X]
        A('v_add_f32 v%d, v%d, v%d' % (v + 4, v, v + 1)); A('v_add_f32 v%d, v%d, v%d' % (v + 5, v + 2, v + 3))
        A('v_add_f32 v%d, v%d, v%d' % (v + 4, v + 4, v + 5)); A('v_mov_b32 v%d, v%d' % (v + 5, v + 4))
    for X in range(2):
        v = VAL[X]
        A('v_permlane32_swap_b32 v%d, v%d' % (v + 4, v + 5))
    for X in range(2):
        v = VAL[X]; p = PB[X]
        A('v_add_f32 v%d, v%d, v%d' % (v + 4, v + 4, v + 5)); A('v_rcp_f32 v%d, v%d' % (v + 4, v + 4))
        for c in range(4): A('v_mul_f32 v%d, v%d, v%d' % (v + c, v + c, v + 4))
        A('v_cvt_pk_bf16_f32 v%d, v%d, v%d' % (v + 6, v, v + 1)); A('v_cvt_pk_bf16_f32 v%d, v%d, v%d' % (v + 7, v + 2, v + 3))
        A('v_mov_b32 v%d, 0' % p); A('v_mov_b32 v%d, 0' % (p + 1))
        for b1 in range(5):
            for pr in range(2):
                A('v_and_b32 v%d, v%d, v%d' % (p + 2 + 2 * b1 + pr, v + 6 + pr, NM + 2 * b1 + pr))
    for X in range(2):
        p = PB[X]
        A('v_mfma_f32_32x32x16_bf16 %s, v[%d:%d], v[%d:%d], 0' % (vr(OO[X], 16), VP, VP + 3, p, p + 3))
        A('v_mfma_f32_32x32x16_bf16 %s, v[%d:%d], v[%d:%d], %s' % (vr(OO[X], 16), VF[0], VF[0] + 3, p + 4, p + 7, vr(OO[X], 16)))
        A('v_mfma_f32_32x32x16_bf16 %s, v[%d:%d], v[%d:%d], %s' % (vr(OO[X], 16), VF[1], VF[1] + 3, p + 8, p + 11, vr(OO[X], 16)))
    A('s_lshl_b32 s37, s34, 15'); A('s_lshl_b32 s38, s33, 11'); A('s_add_u32 s37, s37, s38'); A('s_add_u32 s37, s37, 0x%x' % OB)
    for X in range(2):
        for d in range(4): A('v_cvt_pk_bf16_f32 v%d, v%d, v%d' % (200 + 4 * X + d, OO[X] + 8 * X + 2 * d, OO[X] + 8 * X + 2 * d + 1))
        A('buffer_store_dwordx4 v[%d:%d], v2, s[28:31], s37 offen offset:%d' % (200 + 4 * X, 203 + 4 * X, 1024 * X))
    A.label('k1_end')
    A('s_endpgm')
    kernels.append(('k1_kernel', 256, 256, K1_LDS, 256 + 24, 256))

def gen_k2():
    kstart('k2_kernel')
    load_args(256 + 43, 'k2_end')
    A('v_lshlrev_b32 v2, 4, v1')
    A('s_cmp_lt_u32 s2, 43')
    A.branch('s_cbranch_scc1 k2_prep')
    A('s_sub_u32 s2, s2, 43')
    srd(32, 4, 2048 * 512 * 2)
    A('s_and_b32 s36, s2, 7'); A('s_lshl_b32 s36, s36, 2'); A('s_bfe_u32 s37, s2, 0x20003'); A('s_add_u32 s36, s36, s37')
    A('s_lshr_b32 s37, s2, 5')
    A('s_and_b32 s38, s3, 1'); A('s_lshr_b32 s39, s3, 1')
    A('s_lshl_b32 s40, s36, 1'); A('s_add_u32 s40, s40, s38')
    A('s_lshl_b32 s41, s40, 15'); A('s_lshl_b32 s42, s39, 14'); A('s_add_u32 s41, s41, s42'); A('s_add_u32 s41, s41, 0x%x' % OB)
    A('s_lshl_b32 s43, s37, 16'); A('s_add_u32 s43, s43, s42'); A('s_add_u32 s43, s43, 0x%x' % WOF)
    for g in range(4):
        A('s_add_u32 s44, s41, %d' % (4096 * g)); A('s_add_u32 s45, s43, %d' % (4096 * g)); A('s_add_u32 s46, s43, %d' % (32768 + 4096 * g))
        for i in range(4):
            t = 4 * g + i
            A('buffer_load_dwordx4 v[%d:%d], v2, s[28:31], s44 offen offset:%d' % (64 + 4 * t, 67 + 4 * t, 1024 * i))
            A('buffer_load_dwordx4 a[%d:%d], v2, s[28:31], s45 offen offset:%d' % (4 * t, 4 * t + 3, 1024 * i))
            A('buffer_load_dwordx4 a[%d:%d], v2, s[28:31], s46 offen offset:%d' % (64 + 4 * t, 64 + 4 * t + 3, 1024 * i))
    A('s_lshl_b32 s47, s37, 1'); A('s_add_u32 s47, s47, s39')
    A('v_and_b32 v3, 31, v1'); A('v_lshrrev_b32 v4, 5, v1')
    A('v_lshlrev_b32 v5, 11, v3'); A('v_lshl_add_u32 v5, v4, 4, v5')
    A('s_lshr_b32 s48, s40, 1'); A('s_lshl_b32 s48, s48, 16'); A('s_lshl_b32 s49, s38, 10'); A('s_add_u32 s48, s48, s49')
    A('s_lshl_b32 s49, s47, 6'); A('s_add_u32 s48, s48, s49')
    A('buffer_load_dwordx4 v[8:11], v5, s[32:35], s48 offen')
    A('buffer_load_dwordx4 v[12:15], v5, s[32:35], s48 offen offset:32')
    A('v_lshlrev_b32 v6, 5, v4')
    A('s_lshl_b32 s49, s47, 7'); A('s_add_u32 s49, s49, %d' % (MOD + 1024 * 4))
    for i, off in enumerate((0, 16, 64, 80)):
        A('buffer_load_dwordx4 v[%d:%d], v6, s[28:31], s49 offen offset:%d' % (16 + 4 * i, 19 + 4 * i, off))
    nload = 48 + 6
    for t in range(16):
        A('s_waitcnt vmcnt(%d)' % (nload - 3 * (t + 1)))
        for f in range(2):
            A('v_mfma_f32_32x32x16_bf16 %s, a[%d:%d], v[%d:%d], %s' % (vr(32 + 16 * f, 16), 64 * f + 4 * t, 64 * f + 4 * t + 3, 64 + 4 * t, 67 + 4 * t, '0' if t == 0 else vr(32 + 16 * f, 16)))
    A('s_lshl_b32 s50, s3, 12'); A('v_add_u32 v7, s50, v2')
    A('s_cmp_eq_u32 s39, 0')
    A.branch('s_cbranch_scc1 k2_kh0')
    for i in range(4): A('ds_write_b128 v7, v[%d:%d] offset:%d' % (32 + 4 * i, 35 + 4 * i, 1024 * i))
    for r in range(16): A('v_mov_b32 v%d, v%d' % (32 + r, 48 + r))
    A.branch('s_branch k2_j')
    A.label('k2_kh0')
    for i in range(4): A('ds_write_b128 v7, v[%d:%d] offset:%d' % (48 + 4 * i, 51 + 4 * i, 1024 * i))
    A.label('k2_j')
    A('s_waitcnt lgkmcnt(0)')
    A('s_barrier')
    A('v_xor_b32 v7, 0x2000, v7')
    for i in range(4): A('ds_read_b128 v[%d:%d], v7 offset:%d' % (64 + 4 * i, 67 + 4 * i, 1024 * i))
    A('s_waitcnt vmcnt(0)')
    unpack8(80, 8); unpack8(88, 12)
    A('s_waitcnt lgkmcnt(0)')
    for r in range(16): A('v_add_f32 v%d, v%d, v%d' % (32 + r, 32 + r, 64 + r))
    for r in range(16): A('v_fma_f32 v%d, v%d, v%d, v%d' % (32 + r, 32 + r, 16 + r, 80 + r))
    for d in range(8): A('v_cvt_pk_bf16_f32 v%d, v%d, v%d' % (64 + d, 32 + 2 * d, 33 + 2 * d))
    A('s_lshl_b32 s50, s40, 15'); A('s_lshl_b32 s51, s47, 11'); A('s_add_u32 s50, s50, s51'); A('s_add_u32 s50, s50, 0x%x' % X1)
    A('buffer_store_dwordx4 v[64:67], v2, s[28:31], s50 offen')
    A('buffer_store_dwordx4 v[68:71], v2, s[28:31], s50 offen offset:1024')
    A('v_mov_b32 v72, 0x3f803f80')
    A('v_mov_b32 v74, 0'); A('v_mov_b32 v75, 0')
    for d in range(8):
        A('v_dot2c_f32_bf16 v74, v%d, v72' % (64 + d))
        A('v_dot2c_f32_bf16 v75, v%d, v%d' % (64 + d, 64 + d))
    A('s_nop 2')
    A('v_mov_b32 v76, v74'); A('v_mov_b32 v77, v75')
    A('v_permlane32_swap_b32 v74, v76'); A('v_permlane32_swap_b32 v75, v77')
    A('v_add_f32 v74, v74, v76'); A('v_add_f32 v75, v75, v77')
    A('s_lshl_b32 s50, s40, 12'); A('s_lshl_b32 s51, s47, 8'); A('s_add_u32 s50, s50, s51'); A('s_add_u32 s50, s50, 0x%x' % ST)
    A('v_lshlrev_b32 v76, 3, v3')
    A('s_mov_b32 exec_hi, 0')
    A('buffer_store_dwordx2 v[74:75], v76, s[28:31], s50 offen')
    A('s_endpgm')
    A.label('k2_prep')
    srd(32, 12, 512 * 1376 * 2)
    A('v_lshrrev_b32 v8, 2, v0'); A('v_and_b32 v9, 3, v0')
    A('v_mul_u32_u24 v3, %d, v8' % (8 * 2752)); A('v_lshl_add_u32 v3, v9, 4, v3')
    A('s_lshl_b32 s36, s2, 6')
    for r in range(8):
        A('buffer_load_dwordx4 v[%d:%d], v3, s[32:35], s36 offen' % (40 + 4 * r, 43 + 4 * r))
        if r < 7: A('s_add_u32 s36, s36, 2752')
    A('v_lshlrev_b32 v4, 5, v8')
    A('s_mov_b32 s37, %d' % (MOD + 2048 * 4)); A('s_mov_b32 s38, %d' % (MOD + 1536 * 4))
    A('buffer_load_dwordx4 v[16:19], v4, s[28:31], s37 offen'); A('buffer_load_dwordx4 v[20:23], v4, s[28:31], s37 offen offset:16')
    A('buffer_load_dwordx4 v[24:27], v4, s[28:31], s38 offen'); A('buffer_load_dwordx4 v[28:31], v4, s[28:31], s38 offen offset:16')
    A('v_mov_b32 v5, 0x3f803f80')
    for j in range(16): A('v_mov_b32 v%d, 0' % (104 + j))
    A('s_waitcnt vmcnt(0)')
    for m in range(4):
        unpack8(120 - 88 + 0, 40 + 8 * m)
        unpack8(120, 44 + 8 * m)
        for j in range(8):
            A('v_fmac_f32 v%d, v%d, v%d' % (112 + j, 24 + 2 * m, 32 + j))
            A('v_fmac_f32 v%d, v%d, v%d' % (112 + j, 24 + 2 * m + 1, 120 + j))
        for j in range(8):
            A('v_mul_f32 v%d, v%d, v%d' % (32 + j, 16 + 2 * m, 32 + j))
            A('v_mul_f32 v%d, v%d, v%d' % (120 + j, 16 + 2 * m + 1, 120 + j))
        for j in range(8):
            A('v_cvt_pk_bf16_f32 v%d, v%d, v%d' % (72 + 4 * j + m, 32 + j, 120 + j))
        for j in range(8):
            A('v_dot2c_f32_bf16 v%d, v%d, v5' % (104 + j, 72 + 4 * j + m))
    A('v_lshrrev_b32 v3, 1, v8'); A('v_lshlrev_b32 v3, 10, v3')
    A('v_and_b32 v4, 1, v8'); A('v_lshl_add_u32 v3, v4, 9, v3')
    A('v_lshrrev_b32 v4, 1, v9'); A('v_lshl_add_u32 v3, v4, 8, v3')
    A('v_and_b32 v4, 1, v9'); A('v_lshl_add_u32 v3, v4, 6, v3')
    A('s_lshl_b32 s36, s2, 15'); A('s_add_u32 s36, s36, 0x%x' % W1F)
    for f in range(8):
        A('buffer_store_dwordx4 v[%d:%d], v3, s[28:31], s36 offen offset:%d' % (72 + 4 * f, 75 + 4 * f, (f >> 2) * 128 + (f & 3) * 16))
    for sh in (4, 8):
        for j in range(16):
            A('v_add_f32_dpp v%d, v%d, v%d row_ror:%d row_mask:0xf bank_mask:0xf' % (104 + j, 104 + j, 104 + j, sh))
    A('v_lshrrev_b32 v3, 4, v0'); A('v_lshlrev_b32 v3, 8, v3'); A('v_lshl_add_u32 v3, v9, 5, v3')
    A('s_mov_b32 s36, 0x000f000f'); A('s_mov_b32 s37, 0x000f000f'); A('s_mov_b64 exec, s[36:37]')
    A('ds_write_b128 v3, v[104:107]'); A('ds_write_b128 v3, v[108:111] offset:16')
    A('ds_write_b128 v3, v[112:115] offset:128'); A('ds_write_b128 v3, v[116:119] offset:144')
    A('s_mov_b64 exec, -1')
    A('s_waitcnt lgkmcnt(0)')
    A('s_barrier')
    A('s_cmp_lg_u32 s3, 0')
    A.branch('s_cbranch_scc1 k2_end')
    A('v_lshlrev_b32 v3, 2, v1')
    for g in range(16): A('ds_read_b32 v%d, v3 offset:%d' % (104 + g, g * 256))
    A('s_waitcnt lgkmcnt(0)')
    for st in (8, 4, 2, 1):
        for g in range(st): A('v_add_f32 v%d, v%d, v%d' % (104 + g, 104 + g, 104 + g + st))
    A('v_lshrrev_b32 v4, 5, v1')
    A('v_mov_b32 v6, 1.0'); A('v_mov_b32 v7, %s' % f32(-LOG2E))
    A('v_cmp_eq_u32 vcc, 1, v4'); A('v_cndmask_b32 v6, v6, v7, vcc'); A('v_mul_f32 v104, v104, v6')
    A('v_and_b32 v3, 31, v1'); A('v_lshlrev_b32 v3, 2, v3'); A('v_lshl_add_u32 v3, v4, 13, v3')
    A('s_lshl_b32 s36, s2, 7'); A('s_add_u32 s36, s36, 0x%x' % UBU)
    A('buffer_store_dword v104, v3, s[28:31], s36 offen')
    A.label('k2_end')
    A('s_endpgm')
    kernels.append(('k2_kernel', 256 + 43, 256, 16384, 256, 128))

def gen_k3():
    kstart('k3_kernel')
    load_args(256, 'k3_end')
    A('v_lshlrev_b32 v2, 4, v1')
    A('s_and_b32 s32, s2, 7'); A('s_lshl_b32 s32, s32, 1'); A('s_bfe_u32 s33, s2, 0x10003'); A('s_add_u32 s32, s32, s33')
    A('s_lshr_b32 s33, s2, 4')
    A('s_lshl_b32 s34, s32, 2'); A('s_add_u32 s34, s34, s3')
    A('s_mul_i32 s35, s33, 3'); A('s_lshl_b32 s36, s33, 1'); A('s_add_u32 s36, s36, 11')
    A('s_cmp_lt_u32 s33, 11'); A('s_cselect_b32 s35, s35, s36'); A('s_cselect_b32 s36, 3, 2')
    A('s_lshl_b32 s37, s35, 15'); A('s_add_u32 s37, s37, 0x%x' % W1F); A('s_lshl_b32 s38, s3, 13'); A('s_add_u32 s37, s37, s38')
    def dma_tile(tl):
        for i in range(8):
            if i % 4 == 0:
                A('s_add_u32 s39, s38, %d' % (tl * 32768 + i * 1024)); A('s_mov_b32 m0, s39')
                A('s_add_u32 s39, s37, %d' % (tl * 32768 + i * 1024))
            A('buffer_load_dwordx4 v2, s[28:31], s39 offen offset:%d lds' % ((i % 4) * 1024))
    A('s_cmp_eq_u32 s36, 2')
    A.branch('s_cbranch_scc1 k3_no3a')
    dma_tile(2)
    A.label('k3_no3a')
    dma_tile(0); dma_tile(1)
    A('s_lshl_b32 s39, s34, 15'); A('s_add_u32 s39, s39, 0x%x' % X1)
    for t in range(32):
        if t % 4 == 0 and t: A('s_add_u32 s39, s39, 4096')
        A('buffer_load_dwordx4 a[%d:%d], v2, s[28:31], s39 offen offset:%d' % (4 * t, 4 * t + 3, (t % 4) * 1024))
    A('v_and_b32 v3, 31, v1'); A('v_lshrrev_b32 v4, 5, v1')
    A('v_lshlrev_b32 v5, 3, v3'); A('v_lshl_add_u32 v5, v4, 11, v5')
    A('s_lshl_b32 s39, s34, 12'); A('s_add_u32 s39, s39, 0x%x' % ST)
    for g in range(8): A('buffer_load_dwordx2 v[%d:%d], v5, s[28:31], s39 offen offset:%d' % (160 + 2 * g, 161 + 2 * g, 256 * g))
    A('v_lshlrev_b32 v6, 5, v4')
    A('s_lshl_b32 s39, s35, 7'); A('s_add_u32 s40, s39, 0x%x' % UBB); A('s_add_u32 s39, s39, 0x%x' % UBU)
    for tl in range(3):
        for i, off in enumerate((0, 16, 64, 80)):
            A('buffer_load_dwordx4 v[%d:%d], v6, s[28:31], s39 offen offset:%d' % (64 + 32 * tl + 4 * i, 67 + 32 * tl + 4 * i, 128 * tl + off))
            A('buffer_load_dwordx4 v[%d:%d], v6, s[28:31], s40 offen offset:%d' % (80 + 32 * tl + 4 * i, 83 + 32 * tl + 4 * i, 128 * tl + off))
    after = 32 + 8 + 24
    A('s_waitcnt vmcnt(%d)' % min(after, 63))
    A('s_barrier')
    A('v_add_u32 v7, 0x10000, v2')
    def body(nt, tag):
        def rd_w(s):
            for tl in range(nt):
                if tl < 2: A('ds_read_b128 a[%d:%d], v2 offset:%d' % (128 + 12 * (s & 1) + 4 * tl, 131 + 12 * (s & 1) + 4 * tl, tl * 32768 + s * 1024))
                else: A('ds_read_b128 a[%d:%d], v7 offset:%d' % (128 + 12 * (s & 1) + 4 * tl, 131 + 12 * (s & 1) + 4 * tl, s * 1024))
        rd_w(0)
        for s in range(32):
            A('s_waitcnt lgkmcnt(0)')
            if s + 1 < 32: rd_w(s + 1)
            A('s_waitcnt vmcnt(%d)' % (after - 1 - s))
            for tl in range(nt):
                wb = 128 + 12 * (s & 1) + 4 * tl
                A('v_mfma_f32_32x32x16_bf16 %s, a[%d:%d], a[%d:%d], %s' % (vr(16 + 16 * tl, 16), wb, wb + 3, 4 * s, 4 * s + 3, '0' if s == 0 else vr(16 + 16 * tl, 16)))
        A('s_waitcnt vmcnt(0)')
        for st in (4, 2, 1):
            for g in range(st):
                A('v_add_f32 v%d, v%d, v%d' % (160 + 2 * g, 160 + 2 * g, 160 + 2 * (g + st)))
                A('v_add_f32 v%d, v%d, v%d' % (161 + 2 * g, 161 + 2 * g, 161 + 2 * (g + st)))
        A('v_mov_b32 v162, v160'); A('v_mov_b32 v163, v161')
        A('v_permlane32_swap_b32 v160, v162'); A('v_permlane32_swap_b32 v161, v163')
        A('v_add_f32 v160, v160, v162'); A('v_add_f32 v161, v161, v163')
        A('v_mul_f32 v160, %s, v160' % f32(1.0 / 512))
        A('v_mul_f32 v161, %s, v161' % f32(1.0 / 512))
        A('v_fma_f32 v161, -v160, v160, v161')
        A('v_max_f32 v161, 0, v161')
        A('v_add_f32 v161, %s, v161' % f32(1e-5))
        A('v_rsq_f32 v161, v161')
        A('v_mul_f32 v161, %s, v161' % f32(-LOG2E))
        A('v_mul_f32 v160, -v160, v161')
        A('s_mul_i32 s39, s34, %d' % (86 * 1024)); A('s_lshl_b32 s40, s35, 11'); A('s_add_u32 s39, s39, s40'); A('s_add_u32 s39, s39, 0x%x' % HID)
        for tl in range(nt):
            acc = 16 + 16 * tl; u = 64 + 32 * tl; bb = u + 16
            for r in range(16): A('v_fma_f32 v%d, v%d, v160, v%d' % (bb + r, u + r, bb + r))
            for r in range(16): A('v_fma_f32 v%d, v%d, v161, v%d' % (acc + r, acc + r, bb + r))
            for r in range(16): A('v_exp_f32 v%d, v%d' % (u + r, acc + r))
            for r in range(16): A('v_add_f32 v%d, 1.0, v%d' % (u + r, u + r))
            for r in range(16): A('v_rcp_f32 v%d, v%d' % (u + r, u + r))
            for r in range(16): A('v_mul_f32 v%d, v%d, v%d' % (acc + r, acc + r, u + r))
            for d in range(8): A('v_cvt_pk_bf16_f32 v%d, v%d, v%d' % (bb + d, acc + 2 * d, acc + 2 * d + 1))
            if tl == 2: A('s_add_u32 s39, s39, 4096')
            o = (2048 * tl) & 4095
            A('buffer_store_dwordx4 v[%d:%d], v2, s[28:31], s39 offen offset:%d' % (bb, bb + 3, o))
            A('buffer_store_dwordx4 v[%d:%d], v2, s[28:31], s39 offen offset:%d' % (bb + 4, bb + 7, o + 1024))
    A('s_cmp_eq_u32 s36, 2')
    A.branch('s_cbranch_scc1 k3_two')
    body(3, 'a')
    A('s_endpgm')
    A.label('k3_two')
    body(2, 'b')
    A.label('k3_end')
    A('s_endpgm')
    kernels.append(('k3_kernel', 256, 256, 98304, 192 + 152, 192))

def gen_k4():
    kstart('k4_kernel')
    load_args(256, 'k4_end')
    A('v_lshlrev_b32 v2, 4, v1')
    srd(32, 20, 2048 * 512 * 2)
    A('s_and_b32 s36, s2, 7'); A('s_lshl_b32 s36, s36, 2'); A('s_bfe_u32 s37, s2, 0x20003'); A('s_add_u32 s36, s36, s37')
    A('s_lshr_b32 s37, s2, 5')
    A('s_mul_i32 s38, s3, 21'); A('s_min_u32 s39, s3, 2'); A('s_add_u32 s38, s38, s39')
    A('s_cmp_lt_u32 s3, 2'); A('s_cselect_b32 s39, 1, 0')
    A('s_mul_i32 s40, s36, %d' % (2 * 86 * 1024)); A('s_lshl_b32 s41, s38, 10'); A('s_add_u32 s40, s40, s41'); A('s_add_u32 s40, s40, 0x%x' % HID)
    A('s_mul_i32 s42, s37, %d' % (2 * 86 * 1024)); A('s_add_u32 s42, s42, s41'); A('s_add_u32 s42, s42, 0x%x' % W2F)
    RING = 12
    def ld(slot, so, off):
        for i in range(4):
            A('buffer_load_dwordx4 a[%d:%d], v2, s[28:31], s%d offen offset:%d' % (16 * slot + 4 * i, 16 * slot + 4 * i + 3, so + i, off))
    def mm(slot, first):
        for pt in range(2):
            for f in range(2):
                acc = 16 + 16 * (2 * f + pt)
                A('v_mfma_f32_32x32x16_bf16 %s, a[%d:%d], a[%d:%d], %s' % (vr(acc, 16), 16 * slot + 8 + 4 * f, 16 * slot + 11 + 4 * f, 16 * slot + 4 * pt, 16 * slot + 4 * pt + 3, '0' if first else vr(acc, 16)))
    A('s_mov_b32 s44, s40'); A('s_add_u32 s45, s40, %d' % (86 * 1024)); A('s_mov_b32 s46, s42'); A('s_add_u32 s47, s42, %d' % (86 * 1024))
    A('s_cmp_eq_u32 s39, 0')
    A.branch('s_cbranch_scc1 k4_noopt1')
    ld(RING, 44, 0)
    for i in range(4): A('s_add_u32 s%d, s%d, 1024' % (44 + i, 44 + i))
    A.label('k4_noopt1')
    issued = [0]
    def issue():
        s = issued[0]
        if s >= 21: return
        if s % 4 == 0 and s:
            for i in range(4): A('s_add_u32 s%d, s%d, 4096' % (44 + i, 44 + i))
        ld(s % RING, 44, (s % 4) * 1024)
        issued[0] += 1
    for i in range(RING): issue()
    extra = [0]
    for s in range(21):
        A('s_waitcnt vmcnt(%d)' % (4 * (issued[0] - 1 - s) + extra[0]))
        mm(s % RING, s == 0)
        issue()
        if s == 21 - RING:
            A('s_and_b32 s48, s3, 1'); A('s_lshr_b32 s49, s3, 1')
            A('s_lshl_b32 s50, s36, 1'); A('s_add_u32 s50, s50, s48')
            A('s_lshl_b32 s51, s37, 1'); A('s_add_u32 s51, s51, s49')
            A('s_lshl_b32 s52, s50, 15'); A('s_lshl_b32 s53, s51, 11'); A('s_add_u32 s52, s52, s53'); A('s_add_u32 s52, s52, 0x%x' % X1)
            A('buffer_load_dwordx4 v[96:99], v2, s[28:31], s52 offen')
            A('buffer_load_dwordx4 v[100:103], v2, s[28:31], s52 offen offset:1024')
            A('v_and_b32 v3, 31, v1'); A('v_lshrrev_b32 v4, 5, v1'); A('v_lshlrev_b32 v6, 5, v4')
            A('s_lshl_b32 s53, s51, 7'); A('s_add_u32 s53, s53, %d' % (MOD + 2560 * 4))
            for i, off in enumerate((0, 16, 64, 80)):
                A('buffer_load_dwordx4 v[%d:%d], v6, s[28:31], s53 offen offset:%d' % (104 + 4 * i, 107 + 4 * i, off))
            extra[0] = 6
    A('s_cmp_eq_u32 s39, 0')
    A.branch('s_cbranch_scc1 k4_noopt2')
    mm(RING, False)
    A.label('k4_noopt2')
    A.drain()
    A('s_lshl_b32 s54, s3, 14'); A('v_add_u32 v7, s54, v2')
    for j in range(4):
        for i in range(4):
            A('ds_write_b128 v7, v[%d:%d] offset:%d' % (16 + 16 * j + 4 * i, 19 + 16 * j + 4 * i, 4096 * j + 1024 * i))
    A('s_waitcnt lgkmcnt(0)')
    A('s_barrier')
    A('s_lshl_b32 s54, s3, 12'); A('v_add_u32 v7, s54, v2')
    for src in range(4):
        for i in range(4):
            A('ds_read_b128 v[%d:%d], v7 offset:%d' % (16 + 16 * src + 4 * i, 19 + 16 * src + 4 * i, 16384 * src + 1024 * i))
    A('s_waitcnt vmcnt(0)')
    unpack8(80, 96); unpack8(88, 100)
    for r in range(16): A('v_mul_f32 v%d, %s, v%d' % (104 + r, f32(-LN2), 104 + r))
    A('s_waitcnt lgkmcnt(0)')
    for r in range(16): A('v_add_f32 v%d, v%d, v%d' % (16 + r, 16 + r, 32 + r))
    for r in range(16): A('v_add_f32 v%d, v%d, v%d' % (48 + r, 48 + r, 64 + r))
    for r in range(16): A('v_add_f32 v%d, v%d, v%d' % (16 + r, 16 + r, 48 + r))
    for r in range(16): A('v_fma_f32 v%d, v%d, v%d, v%d' % (16 + r, 16 + r, 104 + r, 80 + r))
    for d in range(8): A('v_cvt_pk_bf16_f32 v%d, v%d, v%d' % (32 + d, 16 + 2 * d, 17 + 2 * d))
    A('v_lshlrev_b32 v5, 11, v3'); A('v_lshl_add_u32 v5, v4, 4, v5')
    A('s_lshr_b32 s52, s50, 1'); A('s_lshl_b32 s52, s52, 16'); A('s_lshl_b32 s53, s48, 10'); A('s_add_u32 s52, s52, s53')
    A('s_lshl_b32 s53, s51, 6'); A('s_add_u32 s52, s52, s53')
    A('buffer_store_dwordx4 v[32:35], v5, s[32:35], s52 offen')
    A('buffer_store_dwordx4 v[36:39], v5, s[32:35], s52 offen offset:32')
    A.label('k4_end')
    A('s_endpgm')
    kernels.append(('k4_kernel', 256, 256, 65536, 128 + 16 * (RING + 1), 128))

def gen_empty(name):
    kstart(name)
    A('s_endpgm')
    kernels.append((name, 256, 256, 0, 8, 8))

def main(out, nempty=0):
    A.raw('.amdgcn_target "amdgcn-amd-amdhsa--gfx950"\n.text')
    gen_k0(); gen_k1(); gen_k2(); gen_k3(); gen_k4()
    order = [k for k in kernels]
    if nempty:
        gen_empty('e0_kernel')
        order = order + [kernels[-1]] * nempty
    hdr = ''
    for (n, g, b, l, nv, ao) in order:
        hdr += '; @launch kernel=%s grid=(%d,1,1) block=(%d,1,1) lds=%d\n' % (n, g, b, l)
    tail = '.section .rodata,"a"\n'
    for (n, g, b, l, nv, ao) in kernels:
        tail += '.p2align 6\n.amdhsa_kernel %s\n  .amdhsa_next_free_vgpr %d\n  .amdhsa_next_free_sgpr 102\n  .amdhsa_accum_offset %d\n  .amdhsa_group_segment_fixed_size 0\n  .amdhsa_kernarg_size 88\n  .amdhsa_user_sgpr_count 2\n  .amdhsa_user_sgpr_kernarg_segment_ptr 1\n  .amdhsa_system_sgpr_workgroup_id_x 1\n.end_amdhsa_kernel\n' % (n, nv, ao)
    open(out, 'w').write(hdr + A.text() + tail)

if __name__ == '__main__':
    main(sys.argv[1], int(sys.argv[2]) if len(sys.argv) > 2 else 0)
```
